```python
import torch

def _softmax(x, axis=-1):
    return torch.softmax(x, dim=axis)
def _gelu(x):
    return torch.nn.functional.gelu(x, approximate="tanh")
def _silu(x):
    return torch.nn.functional.silu(x)
def _sigmoid(x):
    return torch.sigmoid(x)
def _layernorm(x, axis=-1, eps=1e-5):
    m = x.mean(dim=axis, keepdim=True)
    v = x.var(dim=axis, keepdim=True, unbiased=False)
    return (x - m) / torch.sqrt(v + eps)
def _scatter_add(tgt, idx, src, axis=0):
    return tgt.clone().index_add_(axis, idx, src)
def _segment_sum(src, seg, n):
    out = torch.zeros((n,) + src.shape[1:], dtype=src.dtype)
    return out.index_add_(0, seg, src)
def _pad(x, pw):
    flat = tuple(v for pair in reversed(pw) for v in pair)
    return torch.nn.functional.pad(x, flat)

kernel_name = 'interleave_layers__mha_block__dense_activation_mish__prompt'

def setup_inputs():

    _w = (lambda a: (lambda t: t.to(torch.bfloat16) if t.is_floating_point() else t)(torch.as_tensor(a)))
    def _A_setup():
        B, S, D, H = 1, 2048, 512, 32
        return {
            "x": _w((lambda *s: torch.randn(*s, dtype=torch.bfloat16) * 0.05)(B, S, D)),
            "wqkv": _w((lambda *s: torch.randn(*s, dtype=torch.bfloat16) * 0.05)(D, 3 * D)),
            "wo": _w((lambda *s: torch.randn(*s, dtype=torch.bfloat16) * 0.05)(D, D)),
        }
    _A_in = _A_setup()

    def _B_setup():
        B, S, D, F = 1, 2048, 512, 1376
        return {
            "x": _w((lambda *s: torch.randn(*s, dtype=torch.bfloat16) * 0.05)(B, S, D)),
            "w1": _w((lambda *s: torch.randn(*s, dtype=torch.bfloat16) * 1.6)(D, F) * (D ** -0.5)),
            "b1": _w((lambda *s: torch.randn(*s, dtype=torch.bfloat16) * 0.2)(F)),
            "w2": _w((lambda *s: torch.randn(*s, dtype=torch.bfloat16) * 0.2)(F, D) * (F ** -0.5)),
        }
    _B_in = _B_setup()

    return {
        "A_x": _A_in["x"],
        "A_wqkv": _A_in["wqkv"],
        "A_wo": _A_in["wo"],
        "B_x": _B_in["x"],
        "B_w1": _B_in["w1"],
        "B_b1": _B_in["b1"],
        "B_w2": _B_in["w2"],
    }

def reference(A_x, A_wqkv, A_wo, B_x, B_w1, B_b1, B_w2):
    def _A_ref(x, wqkv, wo):
        B, S, D = x.shape
        H = 32
        Dh = D // H
        qkv = (lambda x, *d: x.permute(*d))((x @ wqkv).reshape(B, S, 3, H, Dh), 2, 0, 3, 1, 4)
        q, k, v = qkv[0], qkv[1], qkv[2]
        scores = torch.einsum("bhqd,bhkd->bhqk", q, k) * (Dh ** -0.5)
        p = _softmax(scores, axis=-1)
        o = torch.einsum("bhqk,bhkd->bhqd", p, v)
        return (lambda x, *d: x.permute(*d))(o, 0, 2, 1, 3).reshape(B, S, D) @ wo

    def _B_ref(x, w1, b1, w2):
        h = torch.einsum("bsd,df->bsf", x, w1) + b1
        sp = torch.log1p(torch.exp(-torch.abs(h))) + torch.where(h > 0, h, torch.zeros_like(h))
        act = h * torch.tanh(sp)
        return torch.einsum("bsf,fd->bsd", act, w2)

    x = A_x
    x = x + _A_ref(_layernorm(x, axis=-1), A_wqkv, A_wo)
    x = x + _B_ref(_layernorm(x, axis=-1), B_w1, B_b1, B_w2)
    x = x + _A_ref(_layernorm(x, axis=-1), A_wqkv, A_wo)
    x = x + _B_ref(_layernorm(x, axis=-1), B_w1, B_b1, B_w2)
    return x
```

```python
import re

TRANS = ("v_exp_f32", "v_log_f32", "v_rcp_f32", "v_rsq_f32", "v_sqrt_f32", "v_sin_f32", "v_cos_f32")

def _regs(tok):
    tok = tok.strip()
    tok = tok.lstrip("-")
    m = re.fullmatch(r"abs\((.*)\)", tok)
    if m: tok = m.group(1)
    m = re.fullmatch(r"\|(.*)\|", tok)
    if m: tok = m.group(1)
    m = re.fullmatch(r"([vas])(\d+)", tok)
    if m: return {(m.group(1), int(m.group(2)))}
    m = re.fullmatch(r"([vas])\[(\d+):(\d+)\]", tok)
    if m: return {(m.group(1), i) for i in range(int(m.group(2)), int(m.group(3)) + 1)}
    if tok == "vcc": return {("s", 106), ("s", 107)}
    if tok == "exec": return {("s", 126), ("s", 127)}
    if tok == "m0": return {("s", 124)}
    return set()

class Ins:
    def __init__(self, text):
        self.text = text
        body = text.split(";")[0].strip()
        parts = body.split(None, 1)
        self.op = parts[0]
        rest = parts[1] if len(parts) > 1 else ""
        ops = [o.strip() for o in rest.split(",")] if rest else []
        self.mods = ""
        if ops:
            last = ops[-1].split(None, 1)
            ops[-1] = last[0]
            self.mods = last[1] if len(last) > 1 else ""
        self.ops = ops
        op = self.op
        base = re.sub(r"_(e32|e64|sdwa|dpp)$", "", op)
        self.base = base
        self.kind = "other"
        self.w = set(); self.r = set()
        R = [_regs(o) for o in ops]
        allr = lambda xs: set().union(*xs) if xs else set()
        if op.startswith("v_mfma"):
            self.kind = "mfma"; self.w = R[0]; self.ab = R[1] | R[2]; self.c = R[3]; self.r = self.ab | self.c
            self.passes = 8 if "32x32" in op else 4
        elif op.startswith("v_cmp"):
            self.kind = "valu"; self.w = R[0]; self.r = allr(R[1:])
        elif base in ("v_readfirstlane_b32", "v_readlane_b32"):
            self.kind = "valu"; self.w = R[0]; self.r = allr(R[1:])
        elif base.startswith("v_permlane") and "swap" in base:
            self.kind = "valu"; self.w = R[0] | R[1]; self.r = R[0] | R[1]
        elif base in ("v_add_co_u32", "v_addc_co_u32", "v_sub_co_u32"):
            self.kind = "valu"; self.w = R[0] | R[1]; self.r = allr(R[2:])
        elif op.startswith("v_"):
            self.kind = "valu"
            if op == "v_nop": pass
            else:
                self.w = R[0]; self.r = allr(R[1:])
                if base in ("v_fmac_f32", "v_dot2c_f32_bf16") or "UNUSED_PRESERVE" in self.mods or base == "v_writelane_b32": self.r |= R[0]
                if base == "v_cndmask_b32" and len(ops) == 3: self.r |= _regs("vcc")
        elif op.startswith("ds_"):
            self.kind = "ds"
            if op.startswith("ds_read") or "permute" in op or "swizzle" in op or "_rtn" in op:
                self.w = R[0]; self.r = allr(R[1:])
            else:
                self.r = allr(R)
        elif op.startswith("buffer_") or op.startswith("global_"):
            self.kind = "vmem"
            islds = " lds" in (" " + self.mods) or "_lds_" in op
            self.islds = islds
            if "load" in op and not islds:
                self.w = R[0]; self.r = allr(R[1:])
            elif "atomic" in op and "sc0" in self.mods and op.startswith("buffer_"):
                self.w = R[0]; self.r = allr(R)
            else:
                self.r = allr(R)
            if islds: self.r |= _regs("m0")
            self.wide = ("store" in op) and (op.endswith("x4") or op.endswith("x3"))
            if self.wide:
                self.data = R[0] if op.startswith("buffer_") else R[1]
        elif op.startswith("s_"):
            self.kind = "salu"
            if op.startswith("s_cmp") or op.startswith("s_cbranch") or op in ("s_branch", "s_nop", "s_waitcnt", "s_barrier", "s_endpgm", "s_setprio", "s_sleep"):
                self.r = allr(R)
            else:
                self.w = R[0] if R else set(); self.r = allr(R[1:])
                if "saveexec" in op: self.w |= _regs("exec")
        self.states = 1
        if op == "s_nop": self.states = int(ops[0], 0) + 1
        self.trans = base in TRANS
        self.dl = base.startswith("v_dot")

def need(p, c):
    n = 0
    vw = {x for x in p.w if x[0] in "va"}
    sw = {x for x in p.w if x[0] == "s"}
    if p.kind == "mfma":
        t = {4: (0, 6, 8, 8, 3), 8: (0, 10, 12, 12, 7)}[p.passes]
        if c.kind == "mfma":
            if c.c & p.w:
                if c.c == p.w and c.passes == p.passes: n = max(n, t[0])
                else: n = max(n, t[1])
            if c.ab & p.w: n = max(n, t[2])
            if (c.w & p.w) and not (c.c == p.w): n = max(n, t[1])
        elif c.kind in ("valu", "ds", "vmem"):
            if (c.r | c.w) & p.w: n = max(n, t[3])
            if c.kind == "valu" and (c.w & p.c): n = max(n, t[4])
            if c.kind in ("ds", "vmem") and (c.w & p.c): n = max(n, t[4])
    if p.kind == "valu":
        if c.kind == "mfma" and (c.r & vw): n = max(n, 3 if p.dl else 2)
        if c.kind == "mfma" and (("s", 126) in sw): n = max(n, 4)
        if c.kind == "valu":
            if p.trans and not c.trans and (c.r & vw): n = max(n, 1)
            if p.trans and c.trans and (c.r & vw): n = max(n, 1)
            if p.dl and ((c.r | c.w) & vw):
                same_c = (c.base == p.base) and not (set().union(*[_regs(o) for o in c.ops[1:3]]) & vw)
                if not same_c: n = max(n, 3)
            if c.base.startswith("v_permlane") and (c.r & vw): n = max(n, 2)
            if c.base in ("v_readfirstlane_b32", "v_readlane_b32") and (c.r & vw): n = max(n, 1)
            if "dpp" in c.op or "row_" in c.mods or "quad_perm" in c.mods:
                if c.r & vw: n = max(n, 2)
            if c.r & sw: n = max(n, 4 if c.base in ("v_readlane_b32", "v_writelane_b32") else 2)
            if "sdwa" in p.op and ((c.r | c.w) & vw): n = max(n, 1)
        if c.kind in ("ds", "vmem") and p.dl and (c.r & vw): n = max(n, 3)
        if c.kind in ("ds", "vmem") and p.trans and (c.r & vw): n = max(n, 1)
        if c.kind == "vmem" and (c.r & sw): n = max(n, 5)
        if c.kind == "salu" and (c.r & sw): n = max(n, 1)
    if p.kind == "salu":
        if ("s", 124) in p.w and c.kind == "vmem" and getattr(c, "islds", False): n = max(n, 1)
    if p.kind == "vmem" and getattr(p, "wide", False):
        if c.w & p.data: n = max(n, 2)
    return n

class Asm:
    def __init__(self):
        self.lines = []
        self.hist = []
        self.autopad = True
        self.npad = 0
        self.count = 0
    def raw(self, s):
        self.lines.append(s)
    def comment(self, s):
        self.lines.append("    ; " + s)
    def label(self, name, flush=True):
        if flush: self.flush()
        self.lines.append(name + ":")
    def flush(self):
        worst = 0; dist = 0
        for p in reversed(self.hist):
            w = 0
            if p.kind == "mfma": w = 12 if p.passes == 8 else 8
            elif p.kind == "valu": w = 5
            elif p.kind == "salu" and ("s", 124) in p.w: w = 1
            elif p.kind == "vmem" and getattr(p, "wide", False): w = 2
            worst = max(worst, w - dist)
            dist += p.states
            if dist > 20: break
        self._nops(worst)
        self.hist = []
    def _nops(self, n):
        while n > 0:
            k = min(n, 16)
            i = Ins("s_nop %d" % (k - 1)); self.lines.append("    s_nop %d" % (k - 1)); self.hist.append(i)
            self.npad += 1
            n -= k
    def __call__(self, text):
        for line in text.strip().split("\n"):
            line = line.strip()
            if not line or line.startswith(";"):
                if line: self.lines.append("    " + line)
                continue
            c = Ins(line)
            dist = 0; short = 0
            for p in reversed(self.hist):
                n = need(p, c)
                if n > dist: short = max(short, n - dist)
                dist += p.states
                if dist > 20: break
            if short > 0:
                assert self.autopad, "hazard before: " + line
                self._nops(short)
            self.lines.append("    " + line)
            self.hist.append(c)
            self.count += 1
            if len(self.hist) > 64: self.hist = self.hist[-32:]
            if c.op.startswith("s_cbranch") or c.op == "s_branch":
                pass
    def text(self):
        return "\n".join(self.lines) + "\n"

def vr(b, n=1):
    return "v%d" % b if n == 1 else "v[%d:%d]" % (b, b + n - 1)
def sr(b, n=1):
    return "s%d" % b if n == 1 else "s[%d:%d]" % (b, b + n - 1)

def kernel_begin(a, name):
    a.raw(".globl %s\n.p2align 8\n.type %s,@function\n%s:" % (name, name, name))
    a.hist = []
def kernel_desc(name, vgpr, sgpr=96, agpr=0):
    acc = (vgpr + 3) // 4 * 4
    nfv = acc + agpr if agpr else vgpr
    return """.p2align 6
.amdhsa_kernel %s
  .amdhsa_next_free_vgpr %d
  .amdhsa_next_free_sgpr %d
  .amdhsa_accum_offset %d
  .amdhsa_group_segment_fixed_size 0
  .amdhsa_kernarg_size 80
  .amdhsa_user_sgpr_count 2
  .amdhsa_user_sgpr_kernarg_segment_ptr 1
  .amdhsa_system_sgpr_workgroup_id_x 1
.end_amdhsa_kernel
""" % (name, nfv, sgpr, acc)
```

```python
import sys
from asmlib import *

MB = 1 << 20
XP, QP, KP, VP, OP, HP = 0, 2*MB, 4*MB, 6*MB, 8*MB, 10*MB
DIAG = 32*MB
WS_BYTES = 268435456
HP_TT = 88 * 1024
QSCALE = 0.25 * 1.4426950408889634
import struct
def f2u(f): return struct.unpack("<I", struct.pack("<f", f))[0]
ONES = 0x3F803F80
STAMP = False

def srd(a, d, base, nbytes):
    a("s_mov_b32 s%d, s%d" % (d, base))
    a("s_mov_b32 s%d, s%d" % (d+1, base+1))
    a("s_mov_b32 s%d, 0x%x" % (d+2, nbytes))
    a("s_mov_b32 s%d, 0x00020000" % (d+3))

def stamp_begin(a):
    if STAMP: a("s_memrealtime s[90:91]")
def stamp_end(a, kidx, ws_srd, wave_s, name):
    if not STAMP: return
    a("s_waitcnt vmcnt(0)")
    a("s_memrealtime s[92:93]")
    a("s_waitcnt lgkmcnt(0)")
    a("s_lshl_b32 s94, s2, 3")
    a("s_add_u32 s94, s94, s%d" % wave_s)
    a("s_lshl_b32 s94, s94, 4")
    a("s_add_u32 s94, s94, 0x%x" % (DIAG + kidx * 65536))
    a("v_mov_b32 v4, s90\nv_mov_b32 v5, s91\nv_mov_b32 v6, s92\nv_mov_b32 v7, s93\nv_mov_b32 v3, 0")
    a("s_mov_b64 exec, 1")
    a("buffer_store_dwordx4 v[4:7], v3, %s, s94 offen" % sr(ws_srd, 4))

def lngemm(a, name, kidx, mode, raw_x):
    qkv = mode == "qkv"
    nwg = 256 if qkv else 240
    rowb = 3072 if qkv else 2752
    wbytes = 512 * rowb
    LDS_CS = 98304
    LDS_ST = LDS_CS + 512
    LDS_XS = LDS_ST + 1024
    XS_ROW = 272
    XS_WAVE = 32 * XS_ROW
    lds = LDS_XS + (4 * XS_WAVE if raw_x else 0)
    kernel_begin(a, name)
    a("s_cmp_ge_u32 s2, %d" % nwg)
    a("s_cbranch_scc1 %s_end" % name)
    stamp_begin(a)
    a("s_load_dwordx2 s[24:25], s[0:1], %d" % (8 if qkv else 32))
    a("s_load_dwordx2 s[26:27], s[0:1], 72")
    if raw_x: a("s_load_dwordx2 s[28:29], s[0:1], 0")
    if not qkv: a("s_load_dwordx2 s[30:31], s[0:1], 40")
    vL = 1
    vT = 2; vT2 = 3
    vDW = 4
    vXo = 8
    vWa = 12
    vS1 = 16; vS2 = 18
    vCS = 20
    vHI = 23
    vWf = 24
    vACC = 48
    vB1 = 96
    vXS = 120
    vX = 128
    sW, sTB, sCB = 20, 21, 22
    a("v_lshrrev_b32 v%d, 6, v0" % vT)
    a("v_and_b32 v%d, 63, v0" % vL)
    a("v_readfirstlane_b32 s%d, v%d" % (sW, vT))
    if qkv:
        a("s_and_b32 s32, s2, 7\ns_lshr_b32 s33, s2, 3")
        a("s_lshr_b32 s34, s32, 1\ns_lshl_b32 s34, s34, 2\ns_and_b32 s35, s33, 3\ns_add_u32 s%d, s34, s35" % sTB)
        a("s_and_b32 s34, s32, 1\ns_lshl_b32 s34, s34, 3\ns_lshr_b32 s35, s33, 2\ns_add_u32 s%d, s34, s35" % sCB)
    else:
        a("s_and_b32 s32, s2, 7\ns_lshr_b32 s33, s2, 3")
        a("s_lshl_b32 s34, s32, 1\ns_and_b32 s35, s33, 1\ns_add_u32 s%d, s34, s35" % sTB)
        a("s_lshr_b32 s%d, s33, 1" % sCB)
    for i in range(3):
        a("v_add_u32 v%d, %d, v%d" % (vT, 64*i, vL))
        a("v_mul_u32_u24 v%d, 43691, v%d" % (vT2, vT))
        a("v_lshrrev_b32 v%d, 19, v%d" % (vT2, vT2))
        a("v_mul_u32_u24 v%d, 12, v%d" % (vDW+i, vT2))
        a("v_sub_u32 v%d, v%d, v%d" % (vT, vT, vDW+i))
        a("v_mul_u32_u24 v%d, %d, v%d" % (vT2, rowb, vT2))
        if qkv:
            a("v_lshrrev_b32 v%d, 2, v%d" % (vDW+i, vT))
            a("v_lshlrev_b32 v%d, 10, v%d" % (vDW+i, vDW+i))
            a("v_and_b32 v%d, 3, v%d" % (vT, vT))
            a("v_lshl_add_u32 v%d, v%d, 4, v%d" % (vDW+i, vT, vDW+i))
            a("v_add_u32 v%d, v%d, v%d" % (vDW+i, vDW+i, vT2))
        else:
            a("v_lshl_add_u32 v%d, v%d, 4, v%d" % (vDW+i, vT, vT2))
        if i: a("v_subrev_u32 v%d, %d, v%d" % (vDW+i, 1024*i, vDW+i))
    a("v_lshrrev_b32 v%d, 5, v%d" % (vHI, vL))
    a("v_bfe_u32 v%d, v%d, 2, 2" % (vT, vL))
    a("v_lshl_add_u32 v%d, v%d, %d, v%d" % (vT, vHI, 3 if raw_x else 2, vT))
    a("v_mul_u32_u24 v%d, 192, v%d" % (vT, vT))
    a("v_bfe_u32 v%d, v%d, 4, 1" % (vT2, vL))
    a("v_lshl_add_u32 v%d, v%d, 5, v%d" % (vT, vT2, vT))
    a("v_and_b32 v%d, 3, v%d" % (vT2, vL))
    a("v_lshl_add_u32 v%d, v%d, 3, v%d" % (vT, vT2, vT))
    for q in range(4):
        a("s_xor_b32 s32, s%d, %d" % (sW, q))
        a("s_mul_i32 s33, s32, 3072")
        a("v_add_u32 v%d, s33, v%d" % (vWa+q, vT))
        if not raw_x:
            a("s_lshl_b32 s33, s32, 10")
            a("v_lshl_add_u32 v%d, v%d, 4, s33" % (vXo+q, vL))
    jjoff = (4 if raw_x else 8) * 192
    if raw_x:
        a("v_lshrrev_b32 v%d, 4, v%d" % (vT, vL))
        a("v_and_b32 v%d, 15, v%d" % (vT2, vL))
        a("v_lshlrev_b32 v%d, 4, v%d" % (vT2, vT2))
        a("v_lshl_add_u32 v%d, v%d, 10, v%d" % (vXo, vT, vT2))
        a("s_mul_i32 s33, s%d, %d" % (sW, XS_WAVE))
        a("s_add_u32 s33, s33, %d" % LDS_XS)
        a("v_mul_u32_u24 v%d, %d, v%d" % (vT, XS_ROW, vT))
        a("v_add3_u32 v%d, v%d, v%d, s33" % (vXS, vT, vT2))
        a("v_and_b32 v%d, 31, v%d" % (vT, vL))
        a("v_mul_u32_u24 v%d, %d, v%d" % (vT, XS_ROW, vT))
        a("v_lshl_add_u32 v%d, v%d, 4, v%d" % (vT, vHI, vT))
        for q in range(4):
            a("s_xor_b32 s32, s%d, %d" % (sW, q))
            a("s_lshl_b32 s32, s32, 5")
            a("s_add_u32 s32, s32, s33")
            a("v_add_u32 v%d, s32, v%d" % (vXS+1+q, vT))
    for r in range(48): a("v_mov_b32 v%d, 0" % (vACC + r))
    for r in range(7): a("v_mov_b32 v%d, 0" % (vS1 + r))
    a("v_lshlrev_b32 v%d, 2, v0" % vT)
    a("v_and_b32 v%d, 511, v%d" % (vT, vT))
    a("ds_write_b32 v%d, v%d offset:%d" % (vT, vS1, LDS_CS - 65536 if False else 0) if False else "v_add_u32 v%d, %d, v%d" % (vT, LDS_CS, vT))
    a("ds_write_b32 v%d, v%d" % (vT, vS1))
    a("s_waitcnt lgkmcnt(0)")
    srd(a, 8, 24, wbytes)
    srd(a, 12, 26, WS_BYTES)
    if raw_x: srd(a, 4, 28, 2048*1024)
    if not qkv: srd(a, 16, 30, 2752)
    a("s_mov_b32 s23, 0x%x" % ONES)
    a("s_mul_i32 s36, s%d, %d" % (sCB, 64 if qkv else 192))
    a("s_mul_i32 s32, s%d, %d" % (sW, 32*rowb))
    a("s_add_u32 s36, s36, s32")
    a("s_mul_i32 s38, s%d, 6144" % sW)
    a("s_lshl_b32 s32, s%d, 2" % sTB)
    a("s_add_u32 s39, s32, s%d" % sW)
    a("s_lshl_b32 s37, s39, 15")
    if not raw_x and XP: a("s_add_u32 s37, s37, 0x%x" % XP)
    xs = sr(4, 4) if raw_x else sr(12, 4)
    for c in range(4):
        for kk in range(2):
            a("s_mov_b32 m0, s38")
            for i in range(3):
                a("buffer_load_dwordx4 v%d, s[8:11], s36 offen%s lds" % (vDW+i, " offset:%d" % (1024*i) if i else ""))
            a("s_add_u32 s36, s36, %d" % (16*rowb if kk == 0 else (128-16)*rowb))
            a("s_add_u32 s38, s38, %d" % (3072 if kk == 0 else 3072*7))
        if raw_x:
            for i in range(8):
                p = 8*c + i
                a("buffer_load_dwordx4 %s, v%d, %s, s37 offen offset:%d" % (vr(vX+4*p, 4), vXo, xs, 256*c))
                a("s_add_u32 s37, s37, %d" % (4096 if i < 7 else -7*4096 & 0xffffffff))
        else:
            for i in range(8):
                p = 8*c + i
                a("buffer_load_dwordx4 %s, v%d, %s, s37 offen" % (vr(vX+4*p, 4), vXo + (p & 3), xs))
                if (p & 3) == 3: a("s_add_u32 s37, s37, 4096")
    def wread(p):
        buf = vWf + 12*(p & 1)
        off0 = ((p >> 2) & 3) * 12288
        for t in range(3):
            for jj in range(2):
                a("ds_read_b64_tr_b16 %s, v%d offset:%d" % (vr(buf+4*t+2*jj, 2), vWa + (p & 3), off0 + jj*jjoff + 64*t))
    nb1 = 0
    for c in range(4):
        a("s_waitcnt vmcnt(%d)" % (14*(3-c) + nb1))
        a("s_barrier")
        if c == 0 and not qkv:
            a("s_mul_i32 s32, s%d, 192" % sCB)
            a("v_lshlrev_b32 v%d, 3, v%d" % (vT, vHI))
            for t in range(3):
                for q in range(4):
                    a("buffer_load_dwordx2 %s, v%d, s[16:19], s32 offen offset:%d" % (vr(vB1+8*t+2*q, 2), vT, 64*t+16*q))
            nb1 = 12
        if c == 2:
            for q in range(4): a("v_add_u32 v%d, 49152, v%d" % (vWa+q, vWa+q))
        if raw_x:
            for i in range(8):
                a("ds_write_b128 v%d, %s offset:%d" % (vXS, vr(vX+4*(8*c+i), 4), i*4*XS_ROW))
            for i in range(8):
                a("ds_read_b128 %s, v%d offset:%d" % (vr(vX+4*(8*c+i), 4), vXS+1+(i & 3), (i >> 2)*128))
        wread(8*c)
        for i in range(8):
            p = 8*c + i
            if i < 7:
                wread(p+1)
                a("s_waitcnt lgkmcnt(6)")
            else:
                a("s_waitcnt lgkmcnt(0)")
            buf = vWf + 12*(p & 1)
            x = vr(vX+4*p, 4)
            for t in range(3):
                w = vr(buf+4*t, 4); acc = vr(vACC+16*t, 16)
                if qkv and t == 2: a("v_mfma_f32_32x32x16_bf16 %s, %s, %s, %s" % (acc, x, w, acc))
                else: a("v_mfma_f32_32x32x16_bf16 %s, %s, %s, %s" % (acc, w, x, acc))
                if t < 2:
                    for d in range(2):
                        xr = vX+4*p+2*t+d
                        a("v_dot2c_f32_bf16 v%d, s23, v%d" % (vS1+d, xr))
                        a("v_dot2c_f32_bf16 v%d, v%d, v%d" % (vS2+d, xr, xr))
            if (p & 3) == 0:
                for d in range(4):
                    for t in range(3):
                        a("v_dot2c_f32_bf16 v%d, s23, v%d" % (vCS+t, buf+4*t+d))
    vMean, vRstd = vS1, vS2
    a("v_and_b32 v%d, 31, v%d" % (vT, vL))
    a("v_lshlrev_b32 v%d, 2, v%d" % (vT, vT))
    a("v_add_u32 v%d, %d, v%d" % (vT, LDS_CS, vT))
    for t in range(3): a("ds_add_f32 v%d, v%d offset:%d" % (vT, vCS+t, 128*t))
    a("v_add_f32 v%d, v%d, v%d" % (vS1, vS1, vS1+1))
    a("v_add_f32 v%d, v%d, v%d" % (vS2, vS2, vS2+1))
    a("v_mov_b32 v%d, v%d" % (vS1+1, vS1))
    a("v_mov_b32 v%d, v%d" % (vS2+1, vS2))
    a("v_permlane32_swap_b32 v%d, v%d" % (vS1, vS1+1))
    a("v_permlane32_swap_b32 v%d, v%d" % (vS2, vS2+1))
    a("v_add_f32 v%d, v%d, v%d" % (vS1, vS1, vS1+1))
    a("v_add_f32 v%d, v%d, v%d" % (vS2, vS2, vS2+1))
    a("v_mul_f32 v%d, 0x%x, v%d" % (vS1, f2u(1/512), vS1))
    a("v_mul_f32 v%d, 0x%x, v%d" % (vS2, f2u(1/512), vS2))
    a("v_fma_f32 v%d, -v%d, v%d, v%d" % (vS2, vS1, vS1, vS2))
    a("v_max_f32 v%d, 0, v%d" % (vS2, vS2))
    a("v_add_f32 v%d, 0x%x, v%d" % (vS2, f2u(1e-5), vS2))
    a("v_rsq_f32 v%d, v%d" % (vS2, vS2))
    vC = vX
    vMr = vX + 48
    if qkv:
        a("v_cmp_eq_u32 vcc, 0, v%d" % vHI)
        a("s_lshl_b32 s32, s%d, 8" % sW)
        a("s_add_u32 s32, s32, %d" % LDS_ST)
        a("v_lshl_add_u32 v%d, v%d, 2, s32" % (vT2, vL))
        a("v_cndmask_b32 v%d, v%d, v%d, vcc" % (vS1+1, vRstd, vMean))
        a("ds_write_b32 v%d, v%d" % (vT2, vS1+1))
    a("s_waitcnt lgkmcnt(0)")
    a("s_barrier")
    a("v_lshlrev_b32 v%d, 4, v%d" % (vT2, vHI))
    a("v_add_u32 v%d, %d, v%d" % (vCS, LDS_CS, vT2))
    for t in range(2 if qkv else 3):
        for q in range(4):
            a("ds_read_b128 %s, v%d offset:%d" % (vr(vC+16*t+4*q, 4), vCS, 128*t+32*q))
    if qkv:
        a("ds_read_b32 v%d, v%d offset:256" % (vCS+2, vT))
        a("v_add_u32 v%d, s32, v%d" % (vCS+1, vT2))
        for s in range(2):
            for q in range(4):
                a("ds_read_b128 %s, v%d offset:%d" % (vr(vMr+16*s+4*q, 4), vCS+1, 128*s+32*q))
        a("v_mul_f32 v%d, 0x%x, v%d" % (vS2+1, f2u(QSCALE), vRstd))
        a("v_lshlrev_b32 v%d, 4, v%d" % (vT, vL))
        a("s_lshl_b32 s33, s%d, 17" % sCB)
        a("s_lshl_b32 s34, s39, 10")
        a("s_add_u32 s33, s33, s34")
        for t in range(2):
            a("s_waitcnt lgkmcnt(%d)" % (13 if t == 0 else 9))
            rs = vS2+1 if t == 0 else vRstd
            for r in range(16):
                acc = vACC+16*t+r
                a("v_fma_f32 v%d, -v%d, v%d, v%d" % (acc, vMean, vC+16*t+r, acc))
            for r in range(16):
                acc = vACC+16*t+r
                a("v_mul_f32 v%d, v%d, v%d" % (acc, rs, acc))
            for r in range(8):
                a("v_cvt_pk_bf16_f32 v%d, v%d, v%d" % (vWf+8*t+r, vACC+16*t+2*r, vACC+16*t+2*r+1))
            a("s_add_u32 s34, s33, 0x%x" % (QP if t == 0 else KP))
            a("s_add_u32 s35, s34, 65536")
            a("buffer_store_dwordx4 %s, v%d, s[12:15], s34 offen" % (vr(vWf+8*t, 4), vT))
            a("buffer_store_dwordx4 %s, v%d, s[12:15], s35 offen" % (vr(vWf+8*t+4, 4), vT))
        a("s_waitcnt lgkmcnt(0)")
        for r in range(16):
            acc = vACC+32+r
            a("v_fma_f32 v%d, -v%d, v%d, v%d" % (acc, vMr+r, vCS+2, acc))
        for r in range(16):
            acc = vACC+32+r
            a("v_mul_f32 v%d, v%d, v%d" % (acc, vMr+16+r, acc))
        for r in range(8):
            a("v_cvt_pk_bf16_f32 v%d, v%d, v%d" % (vWf+16+r, vACC+32+2*r, vACC+32+2*r+1))
        a("v_bfe_u32 v%d, v%d, 4, 1" % (vT, vL))
        a("v_lshlrev_b32 v%d, 16, v%d" % (vT, vT))
        a("v_lshl_add_u32 v%d, v%d, 8, v%d" % (vT, vHI, vT))
        a("v_and_b32 v%d, 15, v%d" % (vT2, vL))
        a("v_lshl_add_u32 v%d, v%d, 4, v%d" % (vT, vT2, vT))
        a("s_add_u32 s34, s33, 0x%x" % VP)
        a("buffer_store_dwordx4 %s, v%d, s[12:15], s34 offen" % (vr(vWf+16, 4), vT))
        a("buffer_store_dwordx4 %s, v%d, s[12:15], s34 offen offset:512" % (vr(vWf+20, 4), vT))
    else:
        a("v_lshlrev_b32 v%d, 4, v%d" % (vT, vL))
        a("s_mul_i32 s33, s39, %d" % HP_TT)
        a("s_mul_i32 s34, s%d, 6144" % sCB)
        a("s_add_u32 s33, s33, s34")
        a("s_add_u32 s33, s33, 0x%x" % HP)
        a("s_mov_b32 s40, 0x%x" % f2u(1.4426950408889634))
        a("s_mov_b32 s41, 0x%x" % f2u(40.0))
        a("s_waitcnt vmcnt(0)")
        vE = vX + 64
        for t in range(3):
            if t == 1:
                a("s_cmp_eq_u32 s%d, 14" % sCB)
                a("s_cbranch_scc1 %s_tail" % name)
            a("s_waitcnt lgkmcnt(%d)" % (8 - 4*t))
            R = range(16)
            A = lambda r: vACC+16*t+r
            for r in R: a("v_fma_f32 v%d, -v%d, v%d, v%d" % (A(r), vMean, vC+16*t+r, A(r)))
            for r in R:
                b = vB1+8*t+(r >> 1)
                if r & 1: a("v_and_b32 v%d, 0xffff0000, v%d" % (vE+r, b))
                else: a("v_lshlrev_b32 v%d, 16, v%d" % (vE+r, b))
            for r in R: a("v_fma_f32 v%d, v%d, v%d, v%d" % (A(r), A(r), vRstd, vE+r))
            for r in R: a("v_mul_f32 v%d, s40, v%d" % (vE+r, A(r)))
            for r in R: a("v_min_f32 v%d, s41, v%d" % (vE+r, vE+r))
            for r in R: a("v_exp_f32 v%d, v%d" % (vE+r, vE+r))
            for r in R: a("v_add_f32 v%d, 2.0, v%d" % (vE+16+r, vE+r))
            for r in R: a("v_mul_f32 v%d, v%d, v%d" % (vE+r, vE+r, vE+16+r))
            for r in R: a("v_add_f32 v%d, 2.0, v%d" % (vE+16+r, vE+r))
            for r in R: a("v_rcp_f32 v%d, v%d" % (vE+16+r, vE+16+r))
            for r in R: a("v_mul_f32 v%d, v%d, v%d" % (A(r), A(r), vE+r))
            for r in R: a("v_mul_f32 v%d, v%d, v%d" % (A(r), A(r), vE+16+r))
            for r in range(8):
                a("v_cvt_pk_bf16_f32 v%d, v%d, v%d" % (vWf+8*t+r, A(2*r), A(2*r+1)))
            a("buffer_store_dwordx4 %s, v%d, s[12:15], s33 offen" % (vr(vWf+8*t, 4), vT))
            a("buffer_store_dwordx4 %s, v%d, s[12:15], s33 offen offset:1024" % (vr(vWf+8*t+4, 4), vT))
            a("s_add_u32 s33, s33, 2048")
        a("s_branch %s_fin" % name)
        a.label("%s_tail" % name)
        for r in range(4): a("v_mov_b32 v%d, 0" % (vWf+8+r))
        a("buffer_store_dwordx4 %s, v%d, s[12:15], s33 offen" % (vr(vWf+8, 4), vT))
        a("buffer_store_dwordx4 %s, v%d, s[12:15], s33 offen offset:1024" % (vr(vWf+8, 4), vT))
        a.label("%s_fin" % name)
    stamp_end(a, kidx, 12, sW, name)
    a.label("%s_end" % name)
    a("s_endpgm")
    return dict(name=name, grid=nwg, block=256, lds=lds, vgpr=256)

def attn(a, name, kidx):
    kernel_begin(a, name)
    a("s_cmp_ge_u32 s2, 256")
    a("s_cbranch_scc1 %s_end" % name)
    stamp_begin(a)
    a("s_load_dwordx2 s[26:27], s[0:1], 72")
    vL, vT, vT2 = 1, 2, 3
    vQ = 4
    vK = 8
    vV = 16
    vS = 32
    vP = 64
    vO = 72
    vM = 88
    vKa, vVa = 104, 105
    vL16 = 106
    sW, sH, sQB, sIT, sPASS = 20, 21, 22, 23, 24
    a("v_lshrrev_b32 v%d, 6, v0" % vT)
    a("v_and_b32 v%d, 63, v0" % vL)
    a("v_readfirstlane_b32 s%d, v%d" % (sW, vT))
    a("v_lshlrev_b32 v%d, 4, v%d" % (vL16, vL))
    a("s_and_b32 s32, s2, 7\ns_lshl_b32 s32, s32, 2\ns_bfe_u32 s33, s2, 0x20003\ns_add_u32 s%d, s32, s33" % sH)
    a("s_lshr_b32 s%d, s2, 5" % sQB)
    a("s_lshl_b32 s34, s%d, 16" % sH)
    a("s_lshl_b32 s35, s%d, 3" % sQB)
    a("s_add_u32 s35, s35, s%d" % sW)
    a("s_lshl_b32 s36, s35, 10")
    a("s_add_u32 s36, s36, s34")
    a("s_add_u32 s36, s36, 0x%x" % QP)
    a("s_lshl_b32 s37, s%d, 10" % sW)
    a("s_add_u32 s38, s34, s37")
    a("s_add_u32 s39, s38, 0x%x" % VP)
    a("s_add_u32 s38, s38, 0x%x" % KP)
    a("s_waitcnt lgkmcnt(0)")
    srd(a, 12, 26, WS_BYTES)
    a("buffer_load_dwordx4 %s, v%d, s[12:15], s36 offen" % (vr(vQ, 4), vL16))
    for j in range(8):
        a("s_mov_b32 m0, s37")
        a("buffer_load_dwordx4 v%d, s[12:15], s38 offen lds" % vL16)
        a("s_add_u32 m0, s37, 65536")
        a("buffer_load_dwordx4 v%d, s[12:15], s39 offen lds" % vL16)
        if j < 7:
            a("s_add_u32 s37, s37, 8192\ns_add_u32 s38, s38, 8192\ns_add_u32 s39, s39, 8192")
    for r in range(16): a("v_mov_b32 v%d, 0x%x" % (vV+r, ONES))
    for r in range(16): a("v_mov_b32 v%d, 0" % (vM+r))
    a("s_mov_b32 s28, 0x0000ffff\ns_mov_b32 s29, 0x0000ffff")
    a("s_mov_b32 s%d, 0" % sPASS)
    a("s_waitcnt vmcnt(14)")
    a("s_barrier")
    a.label("%s_run" % name)
    for r in range(16): a("v_mov_b32 v%d, 0" % (vO+r))
    for r in range(4): a("v_mov_b32 v%d, 0" % (vP+4+r))
    a("v_mov_b32 v%d, v%d" % (vKa, vL16))
    a("v_lshrrev_b32 v%d, 5, v%d" % (vT, vL))
    a("v_and_b32 v%d, 15, v%d" % (vT2, vL))
    a("v_lshlrev_b32 v%d, 4, v%d" % (vT2, vT2))
    a("v_lshl_add_u32 v%d, v%d, 8, v%d" % (vVa, vT, vT2))
    a("v_add_u32 v%d, 65536, v%d" % (vVa, vVa))
    a("ds_read_b128 %s, v%d" % (vr(vK, 4), vKa))
    a("ds_read_b128 %s, v%d offset:1024" % (vr(vK+4, 4), vKa))
    a("s_mov_b64 exec, s[28:29]")
    a("ds_read_b128 %s, v%d" % (vr(vV, 4), vVa))
    a("ds_read_b128 %s, v%d offset:512" % (vr(vV+4, 4), vVa))
    a("s_mov_b64 exec, -1")
    a("s_mov_b32 s%d, 0" % sIT)
    a("s_waitcnt lgkmcnt(0)")
    a("v_mfma_f32_32x32x16_bf16 %s, %s, %s, %s" % (vr(vS, 16), vr(vK, 4), vr(vQ, 4), vr(vM, 16)))
    U = 4
    def body(b):
        b("s_cmp_eq_u32 s%d, 1" % sIT)
        b("s_cbranch_scc1 %s_w1" % name)
        b("s_cmp_eq_u32 s%d, 3" % sIT)
        b("s_cbranch_scc1 %s_w2" % name)
        b.raw("%s_cont:" % name)
        for u in range(U):
            cur, nxt = u & 1, (u+1) & 1
            S = vS + 16*cur
            E = lambda r: b("v_exp_f32 v%d, v%d" % (S+r, S+r))
            C = lambda k: b("v_cvt_pk_bf16_f32 v%d, v%d, v%d" % (vP+k, S+2*k, S+2*k+1))
            b("s_waitcnt lgkmcnt(0)")
            b("v_mfma_f32_32x32x16_bf16 %s, %s, %s, %s" % (vr(vS+16*nxt, 16), vr(vK+4*nxt, 4), vr(vQ, 4), vr(vM, 16)))
            b("ds_read_b128 %s, v%d offset:%d" % (vr(vK+4*cur, 4), vKa, 1024*(u+2)))
            E(0); E(1)
            b("v_mfma_f32_32x32x16_bf16 %s, %s, %s, %s" % (vr(vO, 16), vr(vV+8*nxt+4, 4), vr(vP+4, 4), vr(vO, 16)))
            b("s_mov_b64 exec, s[28:29]")
            b("ds_read_b128 %s, v%d offset:%d" % (vr(vV+8*nxt, 4), vVa, 1024*(u+1)))
            b("ds_read_b128 %s, v%d offset:%d" % (vr(vV+8*nxt+4, 4), vVa, 1024*(u+1)+512))
            b("s_mov_b64 exec, -1")
            E(2); C(0); E(3); E(4); C(1); E(5); E(6); C(2); E(7); E(8); C(3); E(9); E(10)
            b("v_mfma_f32_32x32x16_bf16 %s, %s, %s, %s" % (vr(vO, 16), vr(vV+8*cur, 4), vr(vP, 4), vr(vO, 16)))
            C(4); E(11); E(12); C(5); E(13); E(14); C(6); E(15)
            if u == U-1:
                b("v_add_u32 v%d, %d, v%d" % (vKa, 1024*U, vKa))
                b("v_add_u32 v%d, %d, v%d" % (vVa, 1024*U, vVa))
                b("s_add_u32 s%d, s%d, 1" % (sIT, sIT))
                b("s_cmp_lt_u32 s%d, %d" % (sIT, 64//U))
            else:
                b("s_nop 0")
            C(7)
        b("s_cbranch_scc1 %s_loop" % name)
    a.label("%s_loop" % name)
    dry = Asm(); body(dry)
    a.hist = list(dry.hist)
    n0 = a.npad
    body(a)
    assert a.npad == n0, "pads in attention loop"
    a("v_mfma_f32_32x32x16_bf16 %s, %s, %s, %s" % (vr(vO, 16), vr(vV+8+4, 4), vr(vP+4, 4), vr(vO, 16)))
    a("s_waitcnt lgkmcnt(0)")
    a("s_cmp_lg_u32 s%d, 0" % sPASS)
    a("s_cbranch_scc1 %s_out" % name)
    a("s_mov_b32 s40, 0x%x" % f2u(2.0**-30))
    a("s_mov_b32 s41, 0x%x" % f2u(2.0**50))
    a("v_cmp_le_f32 vcc, s40, v%d" % (vO+8))
    a("v_cmp_ge_f32 s[42:43], s41, v%d" % (vO+8))
    a("s_and_b64 s[42:43], s[42:43], vcc")
    a("s_movk_i32 s44, 0x1f8")
    for r in range(8):
        a("v_cmp_class_f32 vcc, v%d, s44" % (vO+r))
        a("s_and_b64 s[42:43], s[42:43], vcc")
    a("s_cmp_eq_u64 s[42:43], -1")
    a("s_cbranch_scc0 %s_slow" % name)
    a.label("%s_out" % name)
    a("v_rcp_f32 v%d, v%d" % (vT, vO+8))
    for r in range(8): a("v_mul_f32 v%d, v%d, v%d" % (vO+r, vT, vO+r))
    for r in range(4): a("v_cvt_pk_bf16_f32 v%d, v%d, v%d" % (vP+r, vO+2*r, vO+2*r+1))
    a("s_lshl_b32 s36, s35, 15")
    a("s_lshl_b32 s37, s%d, 10" % sH)
    a("s_add_u32 s36, s36, s37")
    a("s_add_u32 s36, s36, 0x%x" % OP)
    a("buffer_store_dwordx4 %s, v%d, s[12:15], s36 offen" % (vr(vP, 4), vL16))
    stamp_end(a, kidx, 12, sW, name)
    a.label("%s_end" % name)
    a("s_endpgm")
    a.label("%s_w1" % name, flush=False)
    a("s_cmp_lg_u32 s%d, 0" % sPASS)
    a("s_cbranch_scc1 %s_cont" % name)
    a("s_waitcnt vmcnt(8)")
    a("s_barrier")
    a("s_branch %s_cont" % name)
    a.label("%s_w2" % name, flush=False)
    a("s_cmp_lg_u32 s%d, 0" % sPASS)
    a("s_cbranch_scc1 %s_cont" % name)
    a("s_waitcnt vmcnt(0)")
    a("s_barrier")
    a("s_branch %s_cont" % name)
    a.label("%s_slow" % name)
    a("v_mov_b32 v%d, v%d" % (vKa, vL16))
    a("v_mov_b32 v%d, 0xff800000" % vT)
    a("s_mov_b32 s%d, 0" % sIT)
    a.label("%s_mloop" % name)
    a("ds_read_b128 %s, v%d" % (vr(vK, 4), vKa))
    a("v_add_u32 v%d, 1024, v%d" % (vKa, vKa))
    a("s_waitcnt lgkmcnt(0)")
    a("v_mfma_f32_32x32x16_bf16 %s, %s, %s, 0" % (vr(vS, 16), vr(vK, 4), vr(vQ, 4)))
    for r in range(8): a("v_max3_f32 v%d, v%d, v%d, v%d" % (vT, vS+2*r, vS+2*r+1, vT))
    a("s_add_u32 s%d, s%d, 1" % (sIT, sIT))
    a("s_cmp_lt_u32 s%d, 64" % sIT)
    a.flush()
    a("s_cbranch_scc1 %s_mloop" % name)
    a("v_mov_b32 v%d, v%d" % (vT2, vT))
    a("v_permlane32_swap_b32 v%d, v%d" % (vT, vT2))
    a("v_max_f32 v%d, v%d, v%d" % (vT, vT, vT2))
    for r in range(16): a("v_sub_f32 v%d, 0, v%d" % (vM+r, vT))
    a("s_mov_b32 s%d, 1" % sPASS)
    a.flush()
    a("s_branch %s_run" % name)
    return dict(name=name, grid=256, block=512, lds=131072+4096, vgpr=112)

def resgemm(a, name, kidx, mode, res_raw, out_raw):
    wo = mode == "wo"
    KS = 32 if wo else 88
    KH = KS // 2
    NCH = KH // 4
    wbytes = (512 if wo else 1376) * 1024
    xbase, xtt = (OP, 32768) if wo else (HP, HP_TT)
    RING = 9
    HALF = RING * 4 * 2048
    AHEAD = 7
    lds = 2 * HALF if not wo else 2 * 4 * 4 * 2048
    if wo: HALF = 4 * 4 * 2048
    kernel_begin(a, name)
    a("s_cmp_ge_u32 s2, 256")
    a("s_cbranch_scc1 %s_end" % name)
    stamp_begin(a)
    a("s_load_dwordx2 s[24:25], s[0:1], %d" % (16 if wo else 48))
    a("s_load_dwordx2 s[26:27], s[0:1], 72")
    if res_raw: a("s_load_dwordx2 s[28:29], s[0:1], 0")
    if out_raw: a("s_load_dwordx2 s[28:29], s[0:1], 56")
    vL, vT, vT2, vHI = 1, 2, 3, 4
    vDW, vL16 = 5, 6
    vWa = 8
    vRS = 12
    vWf = 20
    vACC = 36
    vX = 68
    sW, sKH, sB, sTB, sCB = 20, 21, 22, 23, 30
    a("v_lshrrev_b32 v%d, 6, v0" % vT)
    a("v_and_b32 v%d, 63, v0" % vL)
    a("v_readfirstlane_b32 s%d, v%d" % (sW, vT))
    a("v_lshlrev_b32 v%d, 4, v%d" % (vL16, vL))
    a("v_lshrrev_b32 v%d, 5, v%d" % (vHI, vL))
    a("s_lshr_b32 s%d, s%d, 1" % (sKH, sW))
    a("s_and_b32 s%d, s%d, 1" % (sB, sW))
    a("s_and_b32 s32, s2, 7\ns_lshr_b32 s33, s2, 3")
    a("s_lshl_b32 s34, s32, 2\ns_and_b32 s35, s33, 3\ns_add_u32 s%d, s34, s35" % sTB)
    a("s_lshr_b32 s%d, s33, 2" % sCB)
    a("v_lshrrev_b32 v%d, 3, v%d" % (vT, vL))
    a("v_bfe_u32 v%d, v%d, 4, 1" % (vT2, vL))
    a("v_lshlrev_b32 v%d, 2, v%d" % (vT2, vT2))
    a("v_and_b32 v%d, 7, v%d" % (vDW, vL))
    a("v_xor_b32 v%d, v%d, v%d" % (vDW, vDW, vT2))
    a("v_lshlrev_b32 v%d, 4, v%d" % (vDW, vDW))
    a("v_lshl_add_u32 v%d, v%d, 10, v%d" % (vDW, vT, vDW))
    a("v_bfe_u32 v%d, v%d, 2, 2" % (vT, vL))
    a("v_lshl_add_u32 v%d, v%d, 2, v%d" % (vT2, vHI, vT))
    a("v_lshlrev_b32 v%d, 7, v%d" % (vT2, vT2))
    a("v_bfe_u32 v%d, v%d, 4, 1" % (vWa, vL))
    a("v_lshl_add_u32 v%d, v%d, 5, v%d" % (vT2, vWa, vT2))
    a("v_and_b32 v%d, 3, v%d" % (vWa, vL))
    a("v_lshl_add_u32 v%d, v%d, 3, v%d" % (vT2, vWa, vT2))
    a("v_lshrrev_b32 v%d, 1, v%d" % (vT, vT))
    a("v_xor_b32 v%d, s%d, v%d" % (vT, sKH, vT))
    a("s_mul_i32 s32, s%d, %d" % (sKH, HALF))
    a("v_add_u32 v%d, s32, v%d" % (vT2, vT2))
    a("v_lshl_add_u32 v%d, v%d, 6, v%d" % (vWa, vT, vT2))
    a("v_xor_b32 v%d, 64, v%d" % (vWa+1, vWa))
    a("v_add_u32 v%d, 32768, v%d" % (vWa+2, vWa))
    a("v_add_u32 v%d, 32768, v%d" % (vWa+3, vWa+1))
    for r in range(32): a("v_mov_b32 v%d, 0" % (vACC+r))
    a("s_waitcnt lgkmcnt(0)")
    srd(a, 8, 24, wbytes)
    srd(a, 12, 26, WS_BYTES)
    if res_raw or out_raw: srd(a, 4, 28, 2048*1024)
    a("s_lshl_b32 s36, s%d, 7" % sCB)
    a("s_mul_i32 s33, s%d, %d" % (sKH, KH*16*1024))
    a("s_add_u32 s36, s36, s33")
    a("s_lshl_b32 s33, s%d, 13" % sB)
    a("s_add_u32 s36, s36, s33")
    a("s_lshl_b32 s33, s%d, 10" % sB)
    a("s_add_u32 s38, s32, s33")
    a("s_lshl_b32 s39, s%d, 1" % sTB)
    a("s_add_u32 s39, s39, s%d" % sB)
    a("s_mul_i32 s37, s39, %d" % xtt)
    a("s_mul_i32 s33, s%d, %d" % (sKH, KH*1024))
    a("s_add_u32 s37, s37, s33")
    a("s_add_u32 s37, s37, 0x%x" % xbase)
    a("s_lshl_b32 s40, s%d, 1" % sCB)
    a("s_add_u32 s40, s40, s%d" % sKH)
    if res_raw:
        a("v_and_b32 v%d, 31, v%d" % (vT, vL))
        a("v_lshlrev_b32 v%d, 10, v%d" % (vT, vT))
        a("v_lshl_add_u32 v%d, v%d, 3, v%d" % (vT, vHI, vT))
        a("s_lshl_b32 s41, s39, 15")
        a("s_lshl_b32 s33, s40, 6")
        a("s_add_u32 s33, s41, s33")
        for q in range(4):
            a("buffer_load_dwordx2 %s, v%d, s[4:7], s33 offen offset:%d" % (vr(vRS+2*q, 2), vT, 16*q))
        nres = 4
    a("s_lshl_b32 s41, s39, 15")
    a("s_lshl_b32 s33, s40, 11")
    a("s_add_u32 s41, s41, s33")
    if XP: a("s_add_u32 s41, s41, 0x%x" % XP)
    if not res_raw:
        a("buffer_load_dwordx4 %s, v%d, s[12:15], s41 offen" % (vr(vRS, 4), vL16))
        a("buffer_load_dwordx4 %s, v%d, s[12:15], s41 offen offset:1024" % (vr(vRS+4, 4), vL16))
    def issue(ch):
        slot = ch % RING
        for i in range(4):
            p = 4*ch + i
            a("s_add_u32 m0, s38, %d" % (slot*8192 + i*2048))
            a("buffer_load_dwordx4 v%d, s[8:11], s36 offen lds" % vDW)
            a("s_add_u32 s36, s36, 16384")
            a("buffer_load_dwordx4 %s, v%d, s[12:15], s37 offen offset:%d" % (vr(vX+4*p, 4), vL16, 1024*i))
        a("s_add_u32 s37, s37, 4096")
    issued = min(AHEAD, NCH)
    for ch in range(issued): issue(ch)
    def wread(p):
        buf = vWf + 8*(p & 1)
        off = ((p // 4) % RING) * 8192 + (p & 3) * 2048
        hi = 2 if off >= 32768 else 0
        if hi: off -= 32768
        for t in range(2):
            for jj in range(2):
                a("ds_read_b64_tr_b16 %s, v%d offset:%d" % (vr(buf+4*t+2*jj, 2), vWa+hi+t, off + jj*1024))
    for ch in range(NCH):
        a("s_waitcnt vmcnt(%d)" % (8*(issued - ch - 1)))
        a("s_barrier")
        wread(4*ch)
        if issued < NCH:
            issue(issued); issued += 1
        for i in range(4):
            p = 4*ch + i
            if i < 3:
                wread(p+1)
                a("s_waitcnt lgkmcnt(4)")
            else:
                a("s_waitcnt lgkmcnt(0)")
            buf = vWf + 8*(p & 1)
            for t in range(2):
                acc = vr(vACC+16*t, 16)
                a("v_mfma_f32_32x32x16_bf16 %s, %s, %s, %s" % (acc, vr(buf+4*t, 4), vr(vX+4*p, 4), acc))
    a("s_barrier")
    a("s_xor_b32 s32, s%d, 2" % sW)
    a("s_lshl_b32 s32, s32, 12")
    a("v_add_u32 v%d, s32, v%d" % (vT, vL16))
    a("s_lshl_b32 s32, s%d, 12" % sW)
    a("v_add_u32 v%d, s32, v%d" % (vT2, vL16))
    for q in range(4): a("ds_write_b128 v%d, %s offset:%d" % (vT, vr(vACC+16+4*q, 4), 1024*q))
    a("s_waitcnt lgkmcnt(0)")
    a("s_barrier")
    for q in range(4): a("ds_read_b128 %s, v%d offset:%d" % (vr(vACC+16+4*q, 4), vT2, 1024*q))
    vE = vX
    for r in range(16):
        b = vRS + (r >> 1)
        if r & 1: a("v_and_b32 v%d, 0xffff0000, v%d" % (vE+r, b))
        else: a("v_lshlrev_b32 v%d, 16, v%d" % (vE+r, b))
    for r in range(16): a("v_add_f32 v%d, v%d, v%d" % (vACC+r, vACC+r, vE+r))
    a("s_waitcnt lgkmcnt(0)")
    for r in range(16): a("v_add_f32 v%d, v%d, v%d" % (vACC+r, vACC+r, vACC+16+r))
    for r in range(8): a("v_cvt_pk_bf16_f32 v%d, v%d, v%d" % (vWf+r, vACC+2*r, vACC+2*r+1))
    if out_raw:
        a("v_permlane32_swap_b32 v%d, v%d" % (vWf, vWf+2))
        a("v_permlane32_swap_b32 v%d, v%d" % (vWf+1, vWf+3))
        a("v_permlane32_swap_b32 v%d, v%d" % (vWf+4, vWf+6))
        a("v_permlane32_swap_b32 v%d, v%d" % (vWf+5, vWf+7))
        a("v_and_b32 v%d, 31, v%d" % (vT, vL))
        a("v_lshlrev_b32 v%d, 10, v%d" % (vT, vT))
        a("v_lshl_add_u32 v%d, v%d, 4, v%d" % (vT, vHI, vT))
        a("s_lshl_b32 s41, s39, 15")
        a("s_lshl_b32 s33, s40, 6")
        a("s_add_u32 s33, s41, s33")
        a("buffer_store_dwordx4 %s, v%d, s[4:7], s33 offen" % (vr(vWf, 4), vT))
        a("buffer_store_dwordx4 %s, v%d, s[4:7], s33 offen offset:32" % (vr(vWf+4, 4), vT))
    else:
        a("buffer_store_dwordx4 %s, v%d, s[12:15], s41 offen" % (vr(vWf, 4), vL16))
        a("buffer_store_dwordx4 %s, v%d, s[12:15], s41 offen offset:1024" % (vr(vWf+4, 4), vL16))
    stamp_end(a, kidx, 12, sW, name)
    a.label("%s_end" % name)
    a("s_endpgm")
    return dict(name=name, grid=256, block=256, lds=lds, vgpr=min(256, vX + 4*KH))

def build(stamp=False, extra_triv=0):
    global STAMP
    STAMP = stamp
    a = Asm()
    ks = {}
    seq = []
    if stamp:
        seq.append(lngemm(a, "qkv1_kernel", 0, "qkv", True))
        seq.append(attn(a, "att1_kernel", 1))
        seq.append(resgemm(a, "wo1_kernel", 2, "wo", True, False))
        seq.append(lngemm(a, "ffa1_kernel", 3, "ffn1", False))
        seq.append(resgemm(a, "ffb1_kernel", 4, "ffn2", False, False))
        seq.append(lngemm(a, "qkv2_kernel", 5, "qkv", False))
        seq.append(attn(a, "att2_kernel", 6))
        seq.append(resgemm(a, "wo2_kernel", 7, "wo", False, False))
        seq.append(lngemm(a, "ffa2_kernel", 8, "ffn1", False))
        seq.append(resgemm(a, "ffb2_kernel", 9, "ffn2", False, True))
    else:
        q1 = lngemm(a, "qkv1_kernel", 0, "qkv", True)
        at = attn(a, "att_kernel", 1)
        w1 = resgemm(a, "wo1_kernel", 2, "wo", True, False)
        fa = lngemm(a, "ffa_kernel", 3, "ffn1", False)
        f1 = resgemm(a, "ffb1_kernel", 4, "ffn2", False, False)
        q2 = lngemm(a, "qkv2_kernel", 5, "qkv", False)
        w2 = resgemm(a, "wo2_kernel", 7, "wo", False, False)
        f2 = resgemm(a, "ffb2_kernel", 9, "ffn2", False, True)
        seq = [q1, at, w1, fa, f1, q2, at, w2, fa, f2]
    if extra_triv:
        kernel_begin(a, "triv_kernel"); a("s_endpgm")
        seq += [dict(name="triv_kernel", grid=256, block=256, lds=0, vgpr=8)] * extra_triv
    head = "".join("; @launch kernel=%s grid=(%d,1,1) block=(%d,1,1) lds=%d\n" % (k["name"], k["grid"], k["block"], k["lds"]) for k in seq)
    head += '.amdgcn_target "amdgcn-amd-amdhsa--gfx950"\n.text\n'
    tail = '.section .rodata,"a"\n'
    seen = set()
    for k in seq:
        if k["name"] in seen: continue
        seen.add(k["name"]); tail += kernel_desc(k["name"], k["vgpr"])
    return head + a.text() + tail

if __name__ == "__main__":
    out = sys.argv[1]
    stamp = "stamp" in sys.argv[2:]
    triv = 10 if "triv" in sys.argv[2:] else 0
    open(out, "w").write(build(stamp, triv))
```
